```python
import torch

def _softmax(x, axis=-1):
    return torch.softmax(x, dim=axis)
def _gelu(x):
    return torch.nn.functional.gelu(x, approximate="tanh")
def _silu(x):
    return torch.nn.functional.silu(x)
def _sigmoid(x):
    return torch.sigmoid(x)
def _layernorm(x, axis=-1, eps=1e-5):
    m = x.mean(dim=axis, keepdim=True)
    v = x.var(dim=axis, keepdim=True, unbiased=False)
    return (x - m) / torch.sqrt(v + eps)
def _scatter_add(tgt, idx, src, axis=0):
    return tgt.clone().index_add_(axis, idx, src)
def _segment_sum(src, seg, n):
    out = torch.zeros((n,) + src.shape[1:], dtype=src.dtype)
    return out.index_add_(0, seg, src)
def _pad(x, pw):
    flat = tuple(v for pair in reversed(pw) for v in pair)
    return torch.nn.functional.pad(x, flat)

kernel_name = 'sequential_preLN__sliding_block_cached__swiglu_ffn__decode'

def setup_inputs():

    _w = (lambda a: (lambda t: t.to(torch.bfloat16) if t.is_floating_point() else t)(torch.as_tensor(a)))
    def _A_setup():
        B, Sq, D = 4, 1, 512
        Hq, Hkv, Sk, Dh = 32, 32, 8192, 128
        assert Hq % Hkv == 0, (Hq, Hkv)
        return {
            "x": _w((lambda *s: torch.randn(*s, dtype=torch.bfloat16) * 0.05)(B, Sq, D)),
            "k_cache": _w((lambda *s: torch.randn(*s, dtype=torch.bfloat16) * 3.2)(B, Hkv, Sk, Dh)),
            "v_cache": _w((lambda *s: torch.randn(*s, dtype=torch.bfloat16) * 0.4)(B, Hkv, Sk, Dh)),
            "wq": _w((lambda *s: torch.randn(*s, dtype=torch.bfloat16) * 3.2)(D, Hq * Dh) * (D ** -0.5)),
            "wo": _w((lambda *s: torch.randn(*s, dtype=torch.bfloat16) * 0.4)(Hq * Dh, D) * ((Hq * Dh) ** -0.5)),
        }
    _A_in = _A_setup()

    def _B_setup():
        B, S, D, F = 4, 1, 512, 1376
        return {
            "x": _w((lambda *s: torch.randn(*s, dtype=torch.bfloat16) * 0.05)(B, S, D)),
            "w_gate": _w((lambda *s: torch.randn(*s, dtype=torch.bfloat16) * 0.05)(D, F)),
            "w_up": _w((lambda *s: torch.randn(*s, dtype=torch.bfloat16) * 0.05)(D, F)),
            "w_down": _w((lambda *s: torch.randn(*s, dtype=torch.bfloat16) * 0.05)(F, D)),
        }
    _B_in = _B_setup()

    return {
        "A_x": _A_in["x"],
        "A_k_cache": _A_in["k_cache"],
        "A_v_cache": _A_in["v_cache"],
        "A_wq": _A_in["wq"],
        "A_wo": _A_in["wo"],
        "B_x": _B_in["x"],
        "B_w_gate": _B_in["w_gate"],
        "B_w_up": _B_in["w_up"],
        "B_w_down": _B_in["w_down"],
    }

def reference(A_x, A_k_cache, A_v_cache, A_wq, A_wo, B_x, B_w_gate, B_w_up, B_w_down):
    def _A_ref(x, k_cache, v_cache, wq, wo):
        B, Sq, D = x.shape
        Hq, Dh = 32, 128
        Hkv, Sk = k_cache.shape[1], k_cache.shape[2]
        W = min(4096, max(256, Sk // 4))
        rep = Hq // Hkv
        q = (lambda x, *d: x.permute(*d))((x @ wq).reshape(B, Sq, Hq, Dh), 0, 2, 1, 3)
        k = (lambda x, n, axis: torch.repeat_interleave(x, n, dim=axis))(k_cache[:, :, Sk - W:, :], rep, axis=1)
        v = (lambda x, n, axis: torch.repeat_interleave(x, n, dim=axis))(v_cache[:, :, Sk - W:, :], rep, axis=1)
        scores = torch.einsum("bhqd,bhkd->bhqk", q, k) * (Dh ** -0.5)
        p = _softmax(scores, axis=-1)
        o = torch.einsum("bhqk,bhkd->bhqd", p, v)
        return (lambda x, *d: x.permute(*d))(o, 0, 2, 1, 3).reshape(B, Sq, Hq * Dh) @ wo

    def _B_ref(x, w_gate, w_up, w_down):
        g = _silu(x @ w_gate)
        u = x @ w_up
        return (g * u) @ w_down

    x = A_x
    h = x + _A_ref(_layernorm(x, axis=-1), A_k_cache, A_v_cache, A_wq, A_wo)
    h2 = h + _B_ref(_layernorm(h, axis=-1), B_w_gate, B_w_up, B_w_down)
    return h2
```

```python
import re

TRANS = ("v_exp_f32", "v_log_f32", "v_rcp_f32", "v_rsq_f32", "v_sqrt_f32", "v_sin_f32", "v_cos_f32")


def _expand(tok):
    tok = tok.strip()
    m = re.fullmatch(r"-?(?:abs\()?([vsa])(\d+)\)?", tok)
    if m:
        return [(m.group(1), int(m.group(2)))]
    m = re.fullmatch(r"([vsa])\[(\d+):(\d+)\]", tok)
    if m:
        return [(m.group(1), i) for i in range(int(m.group(2)), int(m.group(3)) + 1)]
    if tok == "vcc":
        return [("s", 106), ("s", 107)]
    if tok == "exec":
        return [("s", 126), ("s", 127)]
    if tok == "m0":
        return [("s", 124)]
    return []


class Ins:
    def __init__(self, text):
        self.text = text
        t = text.split(";")[0].strip()
        self.label = t.endswith(":")
        self.op = ""
        self.ops = []
        if not t or self.label or t.startswith("."):
            return
        parts = t.split(None, 1)
        self.op = parts[0]
        rest = parts[1] if len(parts) > 1 else ""
        toks = []
        depth = 0
        cur = ""
        for ch in rest:
            if ch == "[":
                depth += 1
            if ch == "]":
                depth -= 1
            if ch == "," and depth == 0:
                toks.append(cur)
                cur = ""
            else:
                cur += ch
        toks.append(cur)
        out = []
        self.mods = ""
        for i, tk in enumerate(toks):
            tk = tk.strip()
            if i == len(toks) - 1:
                sp = tk.split(None, 1)
                if sp:
                    out.append(sp[0])
                    self.mods = sp[1] if len(sp) > 1 else ""
            else:
                out.append(tk)
        self.ops = out
        op = self.op
        self.is_valu = op.startswith("v_") and not op.startswith("v_mfma")
        self.is_mfma = op.startswith("v_mfma")
        self.is_dot = op.startswith("v_dot")
        self.is_trans = op.replace("_e32", "") in TRANS
        self.is_dpp = "row_" in self.mods or "quad_perm" in self.mods or op.endswith("_dpp")
        self.is_vmem = op.startswith("buffer_") or op.startswith("global_")
        self.is_ds = op.startswith("ds_")
        self.is_salu = op.startswith("s_")
        self.is_perm = op.startswith("v_permlane")
        self.is_rl = op.startswith("v_readlane") or op.startswith("v_readfirstlane")
        self.writes = []
        self.reads = []
        if self.is_valu or self.is_mfma:
            self.writes = _expand(out[0]) if out else []
            for tk in out[1:]:
                self.reads += _expand(tk)
            if op.startswith("v_fmac") or op.startswith("v_dot2c") or self.is_perm:
                self.reads += _expand(out[0])
            if self.is_perm:
                self.writes += _expand(out[1])
            if op.startswith("v_cndmask") and len(out) == 3:
                self.reads += _expand("vcc")
            if op.startswith("v_add_co") or op.startswith("v_addc_co"):
                self.writes += _expand(out[1])
        elif self.is_vmem:
            if "store" in op or ("atomic" in op):
                for tk in out:
                    self.reads += _expand(tk)
                if "atomic" in op and "sc0" in self.mods:
                    self.writes = _expand(out[0])
            elif " lds" in (" " + self.mods) and "load" in op:
                for tk in out:
                    self.reads += _expand(tk)
                self.reads += _expand("m0")
            else:
                self.writes = _expand(out[0])
                for tk in out[1:]:
                    self.reads += _expand(tk)
        elif self.is_ds:
            if op.startswith("ds_read") or op.startswith("ds_bpermute") or op.startswith("ds_swizzle"):
                self.writes = _expand(out[0])
                for tk in out[1:]:
                    self.reads += _expand(tk)
            else:
                for tk in out:
                    self.reads += _expand(tk)
        elif self.is_salu:
            if op.startswith("s_cmp") or op.startswith("s_cbranch") or op in ("s_waitcnt", "s_nop", "s_barrier", "s_sleep", "s_branch", "s_endpgm", "s_setprio"):
                for tk in out:
                    self.reads += _expand(tk)
            else:
                self.writes = _expand(out[0]) if out else []
                for tk in out[1:]:
                    self.reads += _expand(tk)
                if "saveexec" in op:
                    self.writes += _expand("exec")

    def states(self):
        if self.op == "s_nop":
            return int(self.ops[0]) + 1
        if self.op == "":
            return 0
        return 1


def need_states(p, c):
    n = 0
    pw = set(p.writes)
    cr = set(c.reads)
    cw = set(c.writes)
    pwv = {r for r in pw if r[0] in "va"}
    pws = {r for r in pw if r[0] == "s"}
    if p.op == "":
        return 0
    if p.is_valu:
        if c.is_valu and c.is_dpp and (pwv & cr):
            n = max(n, 2)
        if c.is_rl and (pwv & cr):
            n = max(n, 1)
        if c.is_perm and (pwv & (cr | cw)):
            n = max(n, 2)
        if c.is_mfma and (pwv & cr):
            n = max(n, 2)
        if pws:
            if (c.is_valu or c.is_mfma) and (pws & cr):
                n = max(n, 4 if (c.is_rl and not c.op.startswith("v_readfirstlane")) else 2)
            if c.is_vmem and (pws & cr):
                n = max(n, 5)
        if p.is_trans and c.is_valu and not c.is_trans and (pwv & (cr | cw)):
            n = max(n, 1)
        if p.is_trans and (c.is_mfma or c.is_vmem or c.is_ds) and (pwv & cr):
            n = max(n, 1)
        if p.is_dot:
            if pwv & (cr | cw):
                same = c.op == p.op
                if same and c.is_dot:
                    srcab = set()
                    for tk in c.ops[1:3]:
                        srcab |= set(_expand(tk))
                    if pwv & srcab:
                        n = max(n, 3)
                else:
                    n = max(n, 3)
    if p.is_mfma:
        if pwv & (cr | cw):
            if c.is_mfma:
                srcab = set()
                for tk in c.ops[1:3]:
                    srcab |= set(_expand(tk))
                if pwv & srcab:
                    n = max(n, 8)
                elif set(_expand(c.ops[3])) & pwv and set(_expand(c.ops[3])) != pwv:
                    n = max(n, 6)
            else:
                n = max(n, 8)
        srcc = set(_expand(p.ops[3])) if len(p.ops) > 3 else set()
        if c.is_valu and (srcc & cw):
            n = max(n, 3)
    if p.is_salu and (("s", 124) in pw) and c.is_vmem and (("s", 124) in cr):
        n = max(n, 1)
    if p.is_vmem and ("store" in p.op) and ("x4" in p.op or "x3" in p.op):
        data = set(_expand(p.ops[0]))
        if data & cw:
            n = max(n, 2)
    return n


def hazard_pass(lines):
    out = []
    hist = []
    inserted = 0
    for ln in lines:
        ins = Ins(ln)
        if ins.op == "" and not ins.label:
            out.append(ln)
            continue
        if ins.label:
            out.append(ln)
            continue
        need = 0
        dist = 0
        for p in reversed(hist):
            r = need_states(p, ins)
            if r > dist:
                need = max(need, r - dist)
            dist += p.states()
            if dist > 12:
                break
        if need > 0:
            nop = Ins(f"s_nop {need-1}")
            out.append(f"  s_nop {need-1}")
            hist.append(nop)
            inserted += 1
        out.append(ln)
        hist.append(ins)
        if len(hist) > 16:
            hist = hist[-16:]
    return out, inserted


class Gen:
    def __init__(self):
        self.lines = []
        self.vm = []
        self.uid = 0

    def __call__(self, s):
        for l in s.strip("\n").split("\n"):
            l = l.strip()
            if l:
                self.lines.append(("" if l.endswith(":") else "  ") + l)

    def vmem(self, s, tag=None):
        self(s)
        self.vm.append(tag)

    def wait(self, tag):
        idx = len(self.vm) - 1 - self.vm[::-1].index(tag)
        n = len(self.vm) - idx - 1
        assert n <= 63
        self(f"s_waitcnt vmcnt({n})")
        self.vm = self.vm[idx + 1:]

    def wait_all(self):
        self("s_waitcnt vmcnt(0)")
        self.vm = []

    def label(self, base):
        self.uid += 1
        return f"L_{base}_{self.uid}"
```

```python
import sys
sys.path.insert(0, "work")
from asmlib import Gen, hazard_pass

NAME = "sequential_preLN__sliding_block_cached__swiglu_ffn__decode"
HEADER = open("cdna_kernels/%s.s.ref" % NAME).read().split("; Override launch geometry")[0]

FW_G, FW_U, FW_D = 0, 32768, 65536
QP = 98304
ML = 114688
OFT = 114752
XNW = 115008
QB = 117056
HN = 117312
HB = 121408
ACT = 129600
FIN = 129856
LDS_BYTES = 131904
WS_INBOX = 0
WS_HACC = 0x100000
WS_FLAG2 = 0x102000
WS_STAMP = 0x108000
WS_FPART = 0x110000
NFFN = 43
WS_SIZE = WS_FPART + NFFN * 8192
SPIN = 400000

SCALE = 0x3db504f3
LOG2E = 0x3fb8aa3b
EPS = 0x3727c5ac


def build(stamps=False, W=10, W0=24, stampwave=0):
    g = Gen()

    def wave_red(op, v, out, s0=12):
        for r in (8, 4, 2, 1):
            g(f"{op}_dpp v{v}, v{v}, v{v} row_ror:{r} row_mask:0xf bank_mask:0xf")
        row_red(op, v, out, s0)

    def row_red(op, v, out, s0=12):
        for i in range(4):
            g(f"v_readlane_b32 s{s0+i}, v{v}, {16*i}")
        g(f"v_mov_b32 v{out}, s{s0}")
        for i in range(1, 4):
            g(f"{op} v{out}, s{s0+i}, v{out}")

    def bf16r(v, t):
        g(f"v_cvt_pk_bf16_f32 v{t}, v{v}, v{v}")
        g(f"v_lshlrev_b32 v{v}, 16, v{t}")

    def bf16r2(a, b, t):
        g(f"v_cvt_pk_bf16_f32 v{t}, v{a}, v{b}")
        g(f"v_lshlrev_b32 v{a}, 16, v{t}")
        g(f"v_and_b32 v{b}, 0xffff0000, v{t}")

    def unpack8(src, dst):
        for i in range(4):
            g(f"v_lshlrev_b32 v{dst+2*i}, 16, v{src+i}")
            g(f"v_and_b32 v{dst+2*i+1}, 0xffff0000, v{src+i}")

    def layernorm(X, T, P):
        a, b_, mean, r, den, t = T + 8, T + 9, T + 10, T + 11, T + 12, T + 13
        g(f"v_add_f32 v{a}, v{X}, v{X+1}")
        for i in range(2, 8):
            g(f"v_add_f32 v{a}, v{a}, v{X+i}")
        wave_red("v_add_f32", a, mean)
        g(f"v_mul_f32 v{mean}, 0x3b000000, v{mean}")
        for i in range(8):
            g(f"v_sub_f32 v{T+i}, v{X+i}, v{mean}")
        g(f"v_mul_f32 v{a}, v{T}, v{T}")
        for i in range(1, 8):
            g(f"v_fmac_f32 v{a}, v{T+i}, v{T+i}")
        wave_red("v_add_f32", a, b_)
        g(f"v_mul_f32 v{b_}, 0x3b000000, v{b_}")
        bf16r(b_, t)
        g(f"v_add_f32 v{b_}, 0x{EPS:08x}, v{b_}")
        bf16r(b_, t)
        g(f"v_sqrt_f32 v{den}, v{b_}")
        bf16r(den, t)
        g(f"v_rcp_f32 v{r}, v{den}")
        bf16r(mean, t)
        for i in range(8):
            g(f"v_sub_f32 v{T+i}, v{X+i}, v{mean}")
        for i in range(0, 8, 2):
            bf16r2(T + i, T + i + 1, t)
        for i in range(8):
            g(f"v_mul_f32 v{a}, v{T+i}, v{r}")
            g(f"v_fma_f32 v{b_}, -v{a}, v{den}, v{T+i}")
            g(f"v_fma_f32 v{T+i}, v{b_}, v{r}, v{a}")
        for i in range(0, 8, 2):
            g(f"v_cvt_pk_bf16_f32 v{P+i//2}, v{T+i}, v{T+i+1}")
            g(f"v_lshlrev_b32 v{T+i}, 16, v{P+i//2}")
            g(f"v_and_b32 v{T+i+1}, 0xffff0000, v{P+i//2}")

    def stamp(idx):
        if not stamps:
            return
        lbl = g.label("st")
        g(f"s_cmp_lg_u32 s3, {stampwave}")
        g(f"s_cbranch_scc1 {lbl}")
        g("s_memrealtime s[36:37]")
        g("s_waitcnt lgkmcnt(0)")
        g("v_mov_b32 v52, s36")
        g("v_mov_b32 v53, s37")
        g(f"s_lshl_b32 s38, s2, 7")
        g(f"s_add_u32 s38, s38, {WS_STAMP + idx*8}")
        g("v_mov_b32 v54, s38")
        g("buffer_store_dwordx2 v[52:53], v54, s[80:83], 0 offen")
        g(f"{lbl}:")

    g(f"{NAME}_kernel:")
    g("s_cmp_ge_u32 s2, 256")
    g("s_cbranch_scc1 L_end")
    g("s_load_dwordx16 s[16:31], s[0:1], 0")
    g("s_load_dwordx8 s[32:39], s[0:1], 64")
    g("v_and_b32 v1, 63, v0")
    g("v_lshrrev_b32 v4, 6, v0")
    g("v_lshrrev_b32 v2, 4, v1")
    g("v_and_b32 v3, 15, v1")
    g("v_readfirstlane_b32 s3, v4")
    g("s_and_b32 s4, s2, 7")
    g("s_lshl_b32 s4, s4, 2")
    g("s_lshr_b32 s9, s2, 3")
    g("s_and_b32 s9, s9, 3")
    g("s_add_u32 s4, s4, s9")
    g("s_lshr_b32 s9, s2, 5")
    g("s_lshr_b32 s5, s9, 1")
    g("s_and_b32 s6, s9, 1")
    g("s_xor_b32 s7, s2, 32")
    for i in range(8):
        g(f"s_mov_b32 s{84+i}, {i*4096}")
    g("v_lshlrev_b32 v6, 4, v1")
    g("s_waitcnt lgkmcnt(0)")

    def srd(d, p, size):
        g(f"s_mov_b32 s{d}, s{p}")
        g(f"s_mov_b32 s{d+1}, s{p+1}")
        if size is not None:
            g(f"s_mov_b32 s{d+2}, 0x{size:x}")
        g(f"s_mov_b32 s{d+3}, 0x00020000")
    srd(40, 18, 0x10000000)
    srd(44, 20, 0x10000000)
    srd(48, 22, 0x400000)
    srd(52, 24, 0x400000)
    srd(56, 16, 4096)
    srd(60, 28, None)
    srd(64, 30, None)
    srd(68, 32, None)
    srd(72, 34, 4096)
    srd(76, 36, 256)
    srd(80, 38, WS_SIZE)
    g(f"s_cmp_lt_u32 s2, {NFFN}")
    g("s_cselect_b32 s62, 0x158000, 0")
    g("s_mov_b32 s66, s62")
    g("s_mov_b32 s70, s62")
    g("s_lshl_b32 s9, s5, 5")
    g("s_add_u32 s9, s9, s4")
    g("s_lshl_b32 s9, s9, 21")
    g("s_add_u32 s9, s9, 0x180000")
    g("s_lshl_b32 s10, s6, 18")
    g("s_add_u32 s10, s10, s9")
    g("s_lshl_b32 s11, s3, 15")
    g("s_add_u32 s10, s10, s11")
    g("v_add_u32 v4, s10, v6")
    stamp(0)

    def sload(i):
        j = i % 32
        off = j * 1024
        sr = "s[40:43]" if i < 32 else "s[44:47]"
        g.vmem(f"buffer_load_dwordx4 v[{128+4*j}:{131+4*j}], v4, {sr}, s{84+off//4096} offen offset:{off%4096} nt", f"L{i}")

    def qwait_and_read():
        g("s_cmp_ge_u32 s3, 2")
        lbl = g.label("qs")
        g(f"s_cbranch_scc1 {lbl}")
        g("v_lshlrev_b32 v7, 2, v0")
        g(f"v_add_u32 v7, {QP}, v7")
        for p in range(16):
            g(f"ds_read_b32 v{20+p}, v7 offset:{p*512}")
        g("s_waitcnt lgkmcnt(0)")
        for st in (8, 4, 2, 1):
            for i in range(st):
                g(f"v_add_f32 v{20+i}, v{20+i}, v{20+i+st}")
        g("v_cvt_pk_bf16_f32 v20, v20, v20")
        g("v_lshlrev_b32 v7, 1, v0")
        g(f"v_add_u32 v7, {QB}, v7")
        g("ds_write_b16 v7, v20")
        g("s_waitcnt lgkmcnt(0)")
        g(f"{lbl}:")
        g("s_barrier")
        g("v_lshlrev_b32 v7, 4, v3")
        g(f"v_add_u32 v7, {QB}, v7")
        g("ds_read_b128 v[56:59], v7")
        g("s_waitcnt lgkmcnt(0)")

    def stream(nissued):
        n = nissued
        for j0 in range(0, 32, 4):
            for jj in range(4):
                j = j0 + jj
                g.wait(f"L{j}")
                a = 96 + j
                kb = 128 + 4 * j
                g(f"v_dot2_f32_bf16 v{a}, v{kb}, v56, 0")
                for i in range(1, 4):
                    g(f"v_dot2_f32_bf16 v{a}, v{kb+i}, v{56+i}, v{a}")
                while n < 64 and n <= j + W and n - 32 <= j:
                    sload(n)
                    n += 1
            for r in (8, 4, 2, 1):
                for jj in range(4):
                    a = 96 + j0 + jj
                    g(f"v_add_f32_dpp v{a}, v{a}, v{a} row_ror:{r} row_mask:0xf bank_mask:0xf")
            for jj in (0, 2):
                a = 96 + j0 + jj
                bf16r2(a, a + 1, 24)
                g(f"v_mul_f32 v{a}, 0x{SCALE:08x}, v{a}")
                g(f"v_mul_f32 v{a+1}, 0x{SCALE:08x}, v{a+1}")
                bf16r2(a, a + 1, 24)
        stamp(2)
        g("v_lshlrev_b32 v7, 2, v1")
        g.vmem("buffer_load_dword v55, v7, s[76:79], 0 offen sc1", "chk")
        g("s_lshl_b32 s9, s4, 7")
        g("s_lshl_b32 s10, s6, 6")
        g("s_add_u32 s9, s9, s10")
        g("s_lshl_b32 s9, s9, 10")
        g("s_lshl_b32 s10, s3, 7")
        g("s_add_u32 s9, s9, s10")
        g("v_lshrrev_b32 v7, 3, v1")
        g("v_lshlrev_b32 v7, 10, v7")
        g("v_and_b32 v8, 7, v1")
        g("v_lshlrev_b32 v8, 4, v8")
        g("v_add_u32 v7, v7, v8")
        g("v_add_u32 v7, s9, v7")
        for k in range(8):
            if k:
                g("v_add_u32 v7, 0x2000, v7")
            g.vmem(f"buffer_load_dwordx4 v[{64+4*k}:{67+4*k}], v7, s[52:55], 0 offen", f"wo{k}")
        g("s_and_b32 s9, s3, 3")
        g("s_lshl_b32 s9, s9, 10")
        g("v_add_u32 v7, s9, v6")
        g.vmem("buffer_load_dwordx4 v[60:63], v7, s[56:59], 0 offen", "xall")
        g("v_lshrrev_b32 v7, 2, v1")
        g("s_lshl_b32 s10, s3, 6")
        g("v_add_u32 v7, s10, v7")
        g("s_movk_i32 s10, 2752")
        g("v_mul_lo_u32 v7, v7, s10")
        g("v_and_b32 v8, 3, v1")
        g("v_lshlrev_b32 v8, 4, v8")
        g("v_add_u32 v7, v7, v8")
        g("s_lshl_b32 s10, s2, 6")
        g("v_add_u32 v7, s10, v7")
        g("s_lshl_b32 s11, s3, 12")
        for i in range(4):
            if i:
                g(f"v_add_u32 v7, {16*2752}, v7")
            g(f"s_add_u32 m0, s11, {FW_G + i*1024}")
            g.vmem("buffer_load_dwordx4 v7, s[60:63], 0 offen nt lds", "fw")
            g(f"s_add_u32 m0, s11, {FW_U + i*1024}")
            g.vmem("buffer_load_dwordx4 v7, s[64:67], 0 offen nt lds", "fw")
        g("s_lshl_b32 s10, s2, 15")
        g("s_add_u32 s10, s10, s11")
        g("v_add_u32 v7, s10, v6")
        for i in range(4):
            if i:
                g("v_add_u32 v7, 1024, v7")
            g(f"s_add_u32 m0, s11, {FW_D + i*1024}")
            g.vmem("buffer_load_dwordx4 v7, s[68:71], 0 offen nt lds", "fw")
        g("v_max_f32 v44, v96, v97")
        for i in range(98, 128, 2):
            g(f"v_max3_f32 v44, v44, v{i}, v{i+1}")
        row_red("v_max_f32", 44, 46)
        for j in range(32):
            g(f"v_sub_f32 v{96+j}, v{96+j}, v46")
            g(f"v_mul_f32 v{96+j}, 0x{LOG2E:08x}, v{96+j}")
            g(f"v_exp_f32 v{96+j}, v{96+j}")
        g("s_nop 0")
        g("v_add_f32 v44, v96, v97")
        g("v_add_f32 v45, v98, v99")
        for j in range(4, 32, 2):
            g(f"v_add_f32 v44, v44, v{96+j}")
            g(f"v_add_f32 v45, v45, v{97+j}")
        g("v_add_f32 v44, v44, v45")
        row_red("v_add_f32", 44, 47)
        for j in range(0, 32, 2):
            bf16r2(96 + j, 97 + j, 45)
        for i in range(8):
            g(f"v_mov_b32 v{12+i}, 0")
        stamp(3)
        for j in range(32):
            kb = 128 + 4 * j
            g(f"v_lshrrev_b32 v{20+(j&1)}, 16, v{96+j}")
            g.wait(f"L{32+j}")
            for i in range(4):
                g(f"v_dot2c_f32_bf16 v{12+2*i}, v{kb+i}, v{20+(j&1)}")
                g(f"v_dot2c_f32_bf16 v{13+2*i}, v{kb+i}, v{96+j}")
            while n < 64 and n <= 32 + j + W:
                sload(n)
                n += 1
        assert n == 64

    g("s_cmp_ge_u32 s3, 4")
    g("s_cbranch_scc1 L_roleB")
    g("s_lshl_b32 s9, s5, 10")
    g("v_add_u32 v7, s9, v6")
    g.vmem("buffer_load_dwordx4 v[16:19], v7, s[56:59], 0 offen", "x")
    g("s_lshl_b32 s9, s3, 7")
    g("v_add_u32 v7, s9, v2")
    g("v_lshlrev_b32 v7, 13, v7")
    g("v_lshlrev_b32 v8, 4, v3")
    g("v_add_u32 v7, v7, v8")
    g("s_lshl_b32 s9, s4, 8")
    g("v_add_u32 v7, s9, v7")
    for j in range(32):
        if j:
            g("v_add_u32 v7, 0x8000, v7")
        g.vmem(f"buffer_load_dwordx4 v[{128+4*j}:{131+4*j}], v7, s[48:51], 0 offen", f"wq{j}")
    g.wait("x")
    unpack8(16, 20)
    layernorm(20, 28, 44)
    g("v_cmp_eq_u32 vcc, s3, v2")
    g("v_lshlrev_b32 v7, 3, v3")
    g("s_lshl_b32 s9, s3, 9")
    g(f"s_add_u32 s9, s9, {XNW}")
    g("v_add_u32 v7, s9, v7")
    g("s_and_saveexec_b64 s[10:11], vcc")
    for r in range(8):
        g(f"ds_write_b32 v7, v{28+r} offset:{(r&3)*128 + (r>>2)*4}")
    g("s_mov_b64 exec, s[10:11]")
    g("v_lshlrev_b32 v7, 7, v2")
    g("v_add_u32 v7, s9, v7")
    g("s_waitcnt lgkmcnt(0)")
    for i in range(8):
        g(f"ds_read_b128 v[{64+4*i}:{67+4*i}], v7 offset:{16*i}")
    for i in range(8):
        g(f"v_mov_b32 v{36+i}, 0")
    g("s_waitcnt lgkmcnt(0)")
    for j in range(32):
        g.wait(f"wq{j}")
        g(f"v_lshrrev_b32 v44, 16, v{64+j}")
        for i in range(4):
            g(f"v_dot2c_f32_bf16 v{36+2*i}, v{128+4*j+i}, v44")
            g(f"v_dot2c_f32_bf16 v{37+2*i}, v{128+4*j+i}, v{64+j}")
    g("v_lshlrev_b32 v7, 5, v0")
    g(f"v_add_u32 v7, {QP}, v7")
    g("ds_write_b128 v7, v[36:39]")
    g("ds_write_b128 v7, v[40:43] offset:16")
    g("s_waitcnt lgkmcnt(0)")
    g("s_barrier")
    for i in range(W):
        sload(i)
    qwait_and_read()
    stamp(1)
    stream(W)
    g("s_branch L_tail")
    g.vm = []
    g("L_roleB:")
    g("s_cmp_lg_u32 s3, 7")
    g("s_cbranch_scc1 L_pre_done")
    for i in range(4):
        g(f"v_mov_b32 v{12+i}, -1")
        g(f"v_mov_b32 v{8+i}, 0")
    g("s_lshl_b32 s9, s2, 9")
    g("v_lshlrev_b32 v7, 3, v1")
    g("v_add_u32 v7, s9, v7")
    g("buffer_store_dwordx2 v[12:13], v7, s[80:83], 0 offen sc1")
    g("s_cmp_lg_u32 s2, 0")
    g("s_cbranch_scc1 L_pre_nz")
    g(f"v_add_u32 v7, 0x{WS_HACC:x}, v6")
    for i in range(9):
        g(f"buffer_store_dwordx4 v[8:11], v7, s[80:83], s{84 + i//4} offen offset:{(i%4)*1024} sc1")
    g("L_pre_nz:")
    g(f"s_cmp_ge_u32 s2, {NFFN}")
    g("s_cbranch_scc1 L_pre_nf")
    g("s_lshl_b32 s9, s2, 13")
    g(f"s_add_u32 s9, s9, 0x{WS_FPART:x}")
    g("v_add_u32 v7, s9, v6")
    for i in range(8):
        g(f"buffer_store_dwordx4 v[12:15], v7, s[80:83], s{84 + i//4} offen offset:{(i%4)*1024} sc1")
    g("L_pre_nf:")
    g("s_and_b32 s9, s2, 3")
    g("s_lshl_b32 s9, s9, 3")
    g("s_lshl_b32 s9, 1, s9")
    g("v_mov_b32 v20, s9")
    g("s_and_b32 s9, s2, 0xfc")
    g("v_mov_b32 v21, s9")
    g("s_waitcnt vmcnt(0)")
    g("s_mov_b64 s[10:11], exec")
    g("s_mov_b64 exec, 1")
    g("buffer_atomic_or v20, v21, s[76:79], 0 offen sc1")
    g("s_mov_b64 exec, s[10:11]")
    g("L_pre_done:")
    for i in range(W0):
        sload(i)
    g("s_barrier")
    qwait_and_read()
    stream(W0)
    g("L_tail:")
    g.vm = []
    stamp(4)
    g("v_lshlrev_b32 v7, 5, v0")
    g(f"v_add_u32 v7, {QP}, v7")
    g("ds_write_b128 v7, v[12:15]")
    g("ds_write_b128 v7, v[16:19] offset:16")
    g("s_lshl_b32 s9, s3, 3")
    g(f"s_add_u32 s9, s9, {ML}")
    g("v_mov_b32 v7, s9")
    g("ds_write_b64 v7, v[46:47]")
    g("s_lshr_b32 s12, s7, 2")
    g("s_and_b32 s13, s7, 3")
    g("s_lshl_b32 s13, s13, 3")
    g("s_mov_b32 s14, 0")
    g("v_lshlrev_b32 v21, 2, v1")
    g("L_chk:")
    g("v_readlane_b32 s9, v55, s12")
    g("v_readlane_b32 s10, v55, 0")
    g("s_lshr_b32 s9, s9, s13")
    g("s_and_b32 s9, s9, s10")
    g("s_and_b32 s9, s9, 1")
    g("s_cbranch_scc1 L_chk_done")
    g("s_sleep 2")
    g("buffer_load_dword v55, v21, s[76:79], 0 offen sc1")
    g("s_waitcnt vmcnt(0)")
    g("s_add_u32 s14, s14, 1")
    g(f"s_cmp_lt_u32 s14, {SPIN}")
    g("s_cbranch_scc1 L_chk")
    g("L_chk_done:")
    g("s_waitcnt lgkmcnt(0)")
    g("s_barrier")
    g("s_cmp_ge_u32 s3, 2")
    g("s_cbranch_scc1 L_t0_done")
    g("v_lshlrev_b32 v7, 2, v0")
    g(f"v_add_u32 v7, {QP}, v7")
    g(f"v_mov_b32 v8, {ML}")
    for i in range(4):
        g(f"ds_read_b128 v[{128+4*i}:{131+4*i}], v8 offset:{16*i}")
    for p in range(32):
        g(f"ds_read_b32 v{12+p}, v7 offset:{p*512}")
    g("s_waitcnt lgkmcnt(32)" if False else "s_waitcnt lgkmcnt(0)")
    g("v_max3_f32 v44, v128, v130, v132")
    g("v_max3_f32 v44, v44, v134, v136")
    g("v_max3_f32 v44, v44, v138, v140")
    g("v_max_f32 v44, v44, v142")
    for w in range(8):
        g(f"v_sub_f32 v{144+w}, v{128+2*w}, v44")
        g(f"v_mul_f32 v{144+w}, 0x{LOG2E:08x}, v{144+w}")
        g(f"v_exp_f32 v{144+w}, v{144+w}")
    for w in range(8):
        g(f"v_add_f32 v{12+4*w}, v{12+4*w}, v{13+4*w}")
        g(f"v_add_f32 v{14+4*w}, v{14+4*w}, v{15+4*w}")
        g(f"v_add_f32 v{12+4*w}, v{12+4*w}, v{14+4*w}")
    g("v_mul_f32 v45, v12, v144")
    g("v_mul_f32 v47, v129, v144")
    for w in range(1, 8):
        g(f"v_fmac_f32 v45, v{12+4*w}, v{144+w}")
        g(f"v_fmac_f32 v47, v{129+2*w}, v{144+w}")
    g("s_cmp_eq_u32 s3, s6")
    g("s_cbranch_scc1 L_t0_own")
    g("s_lshl_b32 s9, s7, 9")
    g("v_lshlrev_b32 v7, 2, v1")
    g("v_add_u32 v7, s9, v7")
    g("buffer_store_dword v45, v7, s[80:83], 0 offen sc1")
    g("v_mov_b32 v46, v44")
    g("v_mov_b32 v7, s9")
    g("s_mov_b64 s[10:11], exec")
    g("s_mov_b64 exec, 1")
    g("buffer_store_dwordx2 v[46:47], v7, s[80:83], 0 offen offset:256 sc1")
    g("s_mov_b64 exec, s[10:11]")
    g("s_branch L_t0_done")
    g("L_t0_own:")
    g("s_lshl_b32 s9, s2, 9")
    g("v_lshlrev_b32 v7, 2, v1")
    g("v_add_u32 v7, s9, v7")
    g("v_mov_b32 v8, s9")
    g("s_mov_b32 s14, 0")
    g("L_poll1:")
    g("buffer_load_dword v12, v7, s[80:83], 0 offen sc1")
    g("buffer_load_dwordx2 v[14:15], v8, s[80:83], 0 offen offset:256 sc1")
    g("s_waitcnt vmcnt(0)")
    g("v_cmp_eq_u32 vcc, -1, v12")
    g("v_cmp_eq_u32 s[10:11], -1, v14")
    g("s_or_b64 vcc, vcc, s[10:11]")
    g("v_cmp_eq_u32 s[10:11], -1, v15")
    g("s_or_b64 vcc, vcc, s[10:11]")
    g("s_cmp_eq_u64 vcc, 0")
    g("s_cbranch_scc1 L_poll1_done")
    g("s_sleep 1")
    g("s_add_u32 s14, s14, 1")
    g(f"s_cmp_lt_u32 s14, {SPIN}")
    g("s_cbranch_scc1 L_poll1")
    g("L_poll1_done:")
    g("v_max_f32 v16, v44, v14")
    g("v_sub_f32 v17, v44, v16")
    g("v_sub_f32 v18, v14, v16")
    g(f"v_mul_f32 v17, 0x{LOG2E:08x}, v17")
    g(f"v_mul_f32 v18, 0x{LOG2E:08x}, v18")
    g("v_exp_f32 v17, v17")
    g("v_exp_f32 v18, v18")
    g("s_nop 0")
    g("v_mul_f32 v45, v45, v17")
    g("v_mul_f32 v46, v47, v17")
    g("v_fmac_f32 v45, v12, v18")
    g("v_fmac_f32 v46, v15, v18")
    g("v_rcp_f32 v47, v46")
    g("s_nop 0")
    g("v_mul_f32 v16, v45, v47")
    g("v_fma_f32 v17, -v16, v46, v45")
    g("v_fma_f32 v16, v17, v47, v16")
    bf16r(16, 17)
    g("v_and_b32 v7, 7, v1")
    g("v_lshlrev_b32 v7, 5, v7")
    g("v_lshrrev_b32 v8, 3, v1")
    g("v_lshlrev_b32 v8, 2, v8")
    g("v_add_u32 v7, v7, v8")
    g(f"v_add_u32 v7, {OFT}, v7")
    g("ds_write_b32 v7, v16")
    g("s_waitcnt lgkmcnt(0)")
    g("L_t0_done:")
    g("v_lshrrev_b32 v7, 3, v1")
    g("v_lshlrev_b32 v7, 5, v7")
    g(f"v_add_u32 v7, {OFT}, v7")
    for i in range(8):
        g(f"v_mov_b32 v{12+i}, 0")
    g("s_barrier")
    stamp(8)
    g("ds_read_b128 v[20:23], v7")
    g("ds_read_b128 v[24:27], v7 offset:16")
    g("v_and_b32 v8, 7, v1")
    g("v_lshlrev_b32 v8, 5, v8")
    g("v_lshrrev_b32 v9, 1, v2")
    g("v_and_b32 v10, 1, v2")
    g("v_lshlrev_b32 v10, 1, v10")
    g("v_add_u32 v9, v9, v10")
    g("v_lshlrev_b32 v9, 2, v9")
    g("v_add_u32 v8, v8, v9")
    g("s_lshl_b32 s9, s5, 11")
    g("s_lshl_b32 s10, s3, 8")
    g("s_add_u32 s9, s9, s10")
    g(f"s_add_u32 s9, s9, 0x{WS_HACC:x}")
    g("v_add_u32 v8, s9, v8")
    g("v_and_b32 v9, 8, v1")
    g("v_cmp_eq_u32 vcc, 0, v9")
    g("s_waitcnt lgkmcnt(0)")
    for k in range(8):
        g(f"v_lshrrev_b32 v{28+k}, 16, v{20+k}")
    for k in range(8):
        for i in range(4):
            g(f"v_dot2c_f32_bf16 v{12+2*i}, v{28+k}, v{64+4*k+i}")
            g(f"v_dot2c_f32_bf16 v{13+2*i}, v{20+k}, v{64+4*k+i}")
    for a in (12, 14, 16, 18):
        g(f"v_permlane32_swap_b32 v{a}, v{a+1}")
    for a in (12, 14, 16, 18):
        g(f"v_add_f32 v{a}, v{a}, v{a+1}")
    for a in (12, 16):
        g(f"v_permlane16_swap_b32 v{a}, v{a+2}")
    for a in (12, 16):
        g(f"v_add_f32 v{a}, v{a}, v{a+2}")
    for a in (12, 16):
        g(f"v_add_f32_dpp v{a}, v{a}, v{a} row_ror:8 row_mask:0xf bank_mask:0xf")
    g("s_and_saveexec_b64 s[10:11], vcc")
    g("buffer_atomic_add_f32 v12, v8, s[80:83], 0 offen")
    g("buffer_atomic_add_f32 v16, v8, s[80:83], 0 offen offset:16")
    g("s_mov_b64 exec, s[10:11]")
    g("s_waitcnt vmcnt(0)")
    g("s_barrier")
    g("s_cmp_lg_u32 s3, 0")
    g("s_cbranch_scc1 L_flag2_done")
    g("s_lshl_b32 s9, s2, 2")
    g(f"s_add_u32 s9, s9, 0x{WS_FLAG2:x}")
    g("v_mov_b32 v7, s9")
    g("v_mov_b32 v8, 1")
    g("s_mov_b64 s[10:11], exec")
    g("s_mov_b64 exec, 1")
    g("buffer_store_dword v8, v7, s[80:83], 0 offen sc1")
    g("s_mov_b64 exec, s[10:11]")
    g("L_flag2_done:")
    stamp(5)
    g(f"s_cmp_ge_u32 s2, {NFFN}")
    g("s_cbranch_scc1 L_end")
    g("v_lshlrev_b32 v7, 3, v2")
    g("v_lshrrev_b32 v8, 2, v3")
    g("v_add_u32 v7, v7, v8")
    g("v_and_b32 v8, 3, v1")
    g("v_lshlrev_b32 v8, 3, v8")
    g("v_lshlrev_b32 v9, 10, v7")
    g("v_add_u32 v9, v9, v8")
    g("s_lshl_b32 s9, s3, 7")
    g(f"s_add_u32 s9, s9, {FW_D}")
    g("v_add_u32 v9, s9, v9")
    for i in range(4):
        g(f"ds_read_b64_tr_b16 v[{32+4*i}:{33+4*i}], v9 offset:{i*32}")
        g(f"ds_read_b64_tr_b16 v[{34+4*i}:{35+4*i}], v9 offset:{i*32+4096}")
    g("s_cmp_ge_u32 s3, 4")
    g("s_cbranch_scc1 L_ffn_hi")
    g(f"v_add_u32 v9, 0x{WS_FLAG2:x}, v6")
    g("s_mov_b32 s14, 0")
    g("L_poll2:")
    g("buffer_load_dwordx4 v[12:15], v9, s[80:83], 0 offen sc1")
    g("s_waitcnt vmcnt(0)")
    g("v_and_b32 v12, v12, v13")
    g("v_and_b32 v14, v14, v15")
    g("v_and_b32 v12, v12, v14")
    g("v_cmp_eq_u32 vcc, 1, v12")
    g("s_cmp_eq_u64 vcc, exec")
    g("s_cbranch_scc1 L_poll2_done")
    g("s_sleep 1")
    g("s_add_u32 s14, s14, 1")
    g(f"s_cmp_lt_u32 s14, {SPIN}")
    g("s_cbranch_scc1 L_poll2")
    g("L_poll2_done:")
    stamp(9)
    g("s_lshl_b32 s9, s3, 11")
    g(f"s_add_u32 s9, s9, 0x{WS_HACC:x}")
    g("v_lshlrev_b32 v9, 5, v1")
    g("v_add_u32 v10, s9, v9")
    g("buffer_load_dwordx4 v[12:15], v10, s[80:83], 0 offen sc1")
    g("buffer_load_dwordx4 v[16:19], v10, s[80:83], 0 offen offset:16 sc1")
    unpack8(60, 128)
    g("s_waitcnt vmcnt(0)")
    for i in range(0, 8, 2):
        bf16r2(12 + i, 13 + i, 20)
    for i in range(8):
        g(f"v_add_f32 v{12+i}, v{12+i}, v{128+i}")
    for i in range(0, 8, 2):
        bf16r2(12 + i, 13 + i, 20)
    g("s_lshl_b32 s9, s3, 11")
    g(f"s_add_u32 s9, s9, {HB}")
    g("v_add_u32 v10, s9, v9")
    g("ds_write_b128 v10, v[12:15]")
    g("ds_write_b128 v10, v[16:19] offset:16")
    layernorm(12, 136, 152)
    g("s_lshl_b32 s9, s3, 10")
    g(f"s_add_u32 s9, s9, {HN}")
    g("v_add_u32 v10, s9, v6")
    g("ds_write_b128 v10, v[152:155]")
    g("s_waitcnt lgkmcnt(0)")
    g("s_barrier")
    stamp(10)
    g("s_barrier")
    g("s_branch L_ffn_down")
    g("L_ffn_hi:")
    g("s_cmp_ge_u32 s3, 6")
    g("s_cbranch_scc1 L_ffn_idle")
    g("v_lshlrev_b32 v9, 6, v7")
    g("v_add_u32 v9, v9, v8")
    g("s_sub_u32 s9, s3, 4")
    g("s_lshl_b32 s9, s9, 5")
    g("v_add_u32 v9, s9, v9")
    g(f"v_add_u32 v10, {FW_U}, v9")
    for ks in range(16):
        g(f"ds_read_b64_tr_b16 v[{128+4*ks}:{129+4*ks}], v9 offset:{ks*2048}")
        g(f"ds_read_b64_tr_b16 v[{130+4*ks}:{131+4*ks}], v9 offset:{ks*2048+256}")
    for ks in range(16):
        g(f"ds_read_b64_tr_b16 v[{192+4*ks}:{193+4*ks}], v10 offset:{ks*2048}")
        g(f"ds_read_b64_tr_b16 v[{194+4*ks}:{195+4*ks}], v10 offset:{ks*2048+256}")
    g("v_and_b32 v9, 3, v1")
    g("v_lshlrev_b32 v9, 10, v9")
    g("v_lshlrev_b32 v10, 4, v2")
    g("v_add_u32 v9, v9, v10")
    g(f"v_add_u32 v9, {HN}, v9")
    for i in range(8):
        g(f"v_mov_b32 v{12+i}, 0")
    g("s_waitcnt lgkmcnt(0)")
    g("s_barrier")
    for ks in range(16):
        g(f"ds_read_b128 v[{64+4*ks}:{67+4*ks}], v9 offset:{ks*64}")
    for ks in range(16):
        g(f"s_waitcnt lgkmcnt({15-ks})")
        g(f"v_mfma_f32_16x16x32_bf16 v[12:15], v[{128+4*ks}:{131+4*ks}], v[{64+4*ks}:{67+4*ks}], v[12:15]")
        g(f"v_mfma_f32_16x16x32_bf16 v[16:19], v[{192+4*ks}:{195+4*ks}], v[{64+4*ks}:{67+4*ks}], v[16:19]")
    for i in range(0, 8, 2):
        bf16r2(12 + i, 13 + i, 20)
    for i in range(4):
        g(f"v_mul_f32 v{20+i}, 0x{LOG2E ^ 0x80000000:08x}, v{12+i}")
        g(f"v_exp_f32 v{20+i}, v{20+i}")
    g("s_nop 0")
    for i in range(4):
        g(f"v_add_f32 v{20+i}, 1.0, v{20+i}")
        g(f"v_rcp_f32 v{24+i}, v{20+i}")
    g("s_nop 0")
    for i in range(4):
        g(f"v_mul_f32 v{28+i}, v{12+i}, v{24+i}")
        g(f"v_fma_f32 v{48+i}, -v{28+i}, v{20+i}, v{12+i}")
        g(f"v_fma_f32 v{12+i}, v{48+i}, v{24+i}, v{28+i}")
    for i in range(0, 4, 2):
        bf16r2(12 + i, 13 + i, 20)
    for i in range(4):
        g(f"v_mul_f32 v{12+i}, v{12+i}, v{16+i}")
    g("v_cvt_pk_bf16_f32 v20, v12, v13")
    g("v_cvt_pk_bf16_f32 v21, v14, v15")
    g("v_lshlrev_b32 v9, 6, v3")
    g("v_lshlrev_b32 v10, 3, v2")
    g("v_add_u32 v9, v9, v10")
    g(f"s_add_u32 s9, s9, {ACT}")
    g("v_add_u32 v9, s9, v9")
    g("v_cmp_gt_u32 vcc, 4, v3")
    g("s_and_saveexec_b64 s[10:11], vcc")
    g("ds_write_b64 v9, v[20:21]")
    g("s_mov_b64 exec, s[10:11]")
    g("s_waitcnt lgkmcnt(0)")
    g("s_barrier")
    g("s_branch L_ffn_down")
    g("L_ffn_idle:")
    g("s_barrier")
    g("s_barrier")
    g("L_ffn_down:")
    g("v_and_b32 v9, 3, v1")
    g("v_lshlrev_b32 v9, 6, v9")
    g("v_lshlrev_b32 v10, 4, v2")
    g("v_add_u32 v9, v9, v10")
    g(f"v_add_u32 v9, {ACT}, v9")
    g("ds_read_b128 v[28:31], v9")
    g("v_lshlrev_b32 v9, 11, v3")
    g("v_add_u32 v9, v9, v10")
    g("s_lshl_b32 s9, s2, 13")
    g("s_lshl_b32 s10, s3, 8")
    g("s_add_u32 s9, s9, s10")
    g(f"s_add_u32 s9, s9, 0x{WS_FPART:x}")
    g("v_add_u32 v9, s9, v9")
    g("v_cmp_gt_u32 vcc, 4, v3")
    g("s_waitcnt lgkmcnt(0)")
    for i in range(4):
        g(f"v_mfma_f32_16x16x32_bf16 v[{12+4*i}:{15+4*i}], v[{32+4*i}:{35+4*i}], v[28:31], 0")
    g("s_and_saveexec_b64 s[10:11], vcc")
    for i in range(4):
        g(f"buffer_store_dwordx4 v[{12+4*i}:{15+4*i}], v9, s[80:83], 0 offen offset:{i*64} sc1")
    g("s_mov_b64 exec, s[10:11]")
    stamp(6)
    g("s_cmp_ge_u32 s2, 32")
    g("s_cbranch_scc1 L_end")
    g("s_lshl_b32 s9, s2, 8")
    g("s_lshl_b32 s10, s3, 13")
    g("s_add_u32 s9, s9, s10")
    g(f"s_add_u32 s9, s9, 0x{WS_FPART:x}")
    g("v_lshlrev_b32 v10, 2, v1")
    g("v_add_u32 v9, s9, v10")
    for i in range(6):
        g(f"s_mov_b32 s{16+i}, {i*65536}")
    g("s_mov_b32 s14, 0")
    g("L_poll3:")
    for i in range(6):
        g(f"buffer_load_dword v{12+i}, v9, s[80:83], s{16+i} offen sc1")
    g("s_waitcnt vmcnt(0)")
    g("v_cmp_eq_u32 vcc, -1, v12")
    for i in range(1, 6):
        g(f"v_cmp_eq_u32 s[10:11], -1, v{12+i}")
        g("s_or_b64 vcc, vcc, s[10:11]")
    g("s_cmp_eq_u64 vcc, 0")
    g("s_cbranch_scc1 L_poll3_done")
    g("s_sleep 1")
    g("s_add_u32 s14, s14, 1")
    g(f"s_cmp_lt_u32 s14, {SPIN}")
    g("s_cbranch_scc1 L_poll3")
    g("L_poll3_done:")
    g("v_add_f32 v12, v12, v13")
    g("v_add_f32 v14, v14, v15")
    g("v_add_f32 v16, v16, v17")
    g("v_add_f32 v12, v12, v14")
    g("v_add_f32 v12, v12, v16")
    g("v_lshlrev_b32 v9, 2, v0")
    g(f"v_add_u32 v9, {FIN}, v9")
    g("ds_write_b32 v9, v12")
    g("s_waitcnt lgkmcnt(0)")
    g("s_barrier")
    g("s_cmp_lg_u32 s3, 0")
    g("s_cbranch_scc1 L_end")
    for w in range(8):
        g(f"ds_read_b32 v{12+w}, v9 offset:{w*256}")
    g("s_lshl_b32 s9, s2, 8")
    g(f"s_add_u32 s9, s9, {HB}")
    g("v_add_u32 v10, s9, v10")
    g("ds_read_b32 v20, v10")
    g("s_waitcnt lgkmcnt(0)")
    for st in (4, 2, 1):
        for i in range(st):
            g(f"v_add_f32 v{12+i}, v{12+i}, v{12+i+st}")
    bf16r(12, 21)
    g("v_add_f32 v12, v12, v20")
    g("v_cvt_pk_bf16_f32 v12, v12, v12")
    g("s_lshl_b32 s9, s2, 7")
    g("v_lshlrev_b32 v10, 1, v1")
    g("v_add_u32 v10, s9, v10")
    g("buffer_store_short v12, v10, s[72:75], 0 offen")
    stamp(7)
    g("L_end:")
    g("s_endpgm")
    lines, n = hazard_pass(g.lines)
    body = "\n".join(lines)
    out = HEADER
    out += "; Override launch geometry by editing the next line (default: block=256,\n"
    out += f"; @launch grid=(256,1,1) block=(512,1,1) lds={LDS_BYTES}\n"
    out += '.amdgcn_target "amdgcn-amd-amdhsa--gfx950"\n.text\n'
    out += f".globl {NAME}_kernel\n.p2align 8\n.type {NAME}_kernel,@function\n"
    out += body + "\n"
    out += f""".section .rodata,"a"
.p2align 6
.amdhsa_kernel {NAME}_kernel
  .amdhsa_next_free_vgpr 256
  .amdhsa_next_free_sgpr 102
  .amdhsa_accum_offset 256
  .amdhsa_group_segment_fixed_size 0
  .amdhsa_kernarg_size 96
  .amdhsa_user_sgpr_count 2
  .amdhsa_user_sgpr_kernarg_segment_ptr 1
  .amdhsa_system_sgpr_workgroup_id_x 1
.end_amdhsa_kernel
"""
    return out, n


if __name__ == "__main__":
    out, n = build(False)
    open("k2.s", "w").write(out)
    open("k2_st.s", "w").write(build(True)[0])
    open("k2_st4.s", "w").write(build(True, stampwave=4)[0])
    for (w, w0) in ((6, 16), (8, 16), (8, 32), (12, 32), (16, 32)):
        open(f"k2_w{w}_{w0}.s", "w").write(build(False, W=w, W0=w0)[0])
    print("nops inserted", n, "lines", out.count("\n"))
```

```python
import sys
sys.path.insert(0, "work")
from asmlib import Gen, hazard_pass

NAME = "sequential_preLN__sliding_block_cached__swiglu_ffn__decode"
HEADER = open("cdna_kernels/%s.s.ref" % NAME).read().split("; Override launch geometry")[0]

FW_G, FW_U, FW_D = 0, 32768, 65536
QP = 98304
S_ = 116736
XNW = 124928
QB = 126976
HN = 127232
HB = 131328
ACT = 139520
FIN = 139776
W1 = 141824
LDS_BYTES = 158208
WS_SCX = 0
WS_HACC = 0x100000
WS_FLAG2 = 0x102000
WS_FPART = 0x110000
NFFN = 43
WS_SIZE = WS_FPART + NFFN * 8192
SPIN = 400000

SCALE = 0x3db504f3
LOG2E = 0x3fb8aa3b
EPS = 0x3727c5ac


def build(stamps=False, kfirst=32, wq_nt=False):
    g = Gen()

    def wave_red(op, v, out, s0=12):
        for r in (8, 4, 2, 1):
            g(f"{op}_dpp v{v}, v{v}, v{v} row_ror:{r} row_mask:0xf bank_mask:0xf")
        for i in range(4):
            g(f"v_readlane_b32 s{s0+i}, v{v}, {16*i}")
        g(f"v_mov_b32 v{out}, s{s0}")
        for i in range(1, 4):
            g(f"{op} v{out}, s{s0+i}, v{out}")

    def bf16r(v, t):
        g(f"v_cvt_pk_bf16_f32 v{t}, v{v}, v{v}")
        g(f"v_lshlrev_b32 v{v}, 16, v{t}")

    def unpack8(src, dst):
        for i in range(4):
            g(f"v_lshlrev_b32 v{dst+2*i}, 16, v{src+i}")
            g(f"v_and_b32 v{dst+2*i+1}, 0xffff0000, v{src+i}")

    def layernorm(X, T, P):
        a, b_, mean, r, den, t = T + 8, T + 9, T + 10, T + 11, T + 12, T + 13
        g(f"v_add_f32 v{a}, v{X}, v{X+1}")
        for i in range(2, 8):
            g(f"v_add_f32 v{a}, v{a}, v{X+i}")
        wave_red("v_add_f32", a, mean)
        g(f"v_mul_f32 v{mean}, 0x3b000000, v{mean}")
        for i in range(8):
            g(f"v_sub_f32 v{T+i}, v{X+i}, v{mean}")
        g(f"v_mul_f32 v{a}, v{T}, v{T}")
        for i in range(1, 8):
            g(f"v_fmac_f32 v{a}, v{T+i}, v{T+i}")
        wave_red("v_add_f32", a, b_)
        g(f"v_mul_f32 v{b_}, 0x3b000000, v{b_}")
        bf16r(b_, t)
        g(f"v_add_f32 v{b_}, 0x{EPS:08x}, v{b_}")
        bf16r(b_, t)
        g(f"v_sqrt_f32 v{den}, v{b_}")
        bf16r(den, t)
        g(f"v_rcp_f32 v{r}, v{den}")
        bf16r(mean, t)
        for i in range(8):
            g(f"v_sub_f32 v{T+i}, v{X+i}, v{mean}")
        for i in range(0, 8, 2):
            g(f"v_cvt_pk_bf16_f32 v{t}, v{T+i}, v{T+i+1}")
            g(f"v_lshlrev_b32 v{T+i}, 16, v{t}")
            g(f"v_and_b32 v{T+i+1}, 0xffff0000, v{t}")
        for i in range(8):
            g(f"v_mul_f32 v{a}, v{T+i}, v{r}")
            g(f"v_fma_f32 v{b_}, -v{a}, v{den}, v{T+i}")
            g(f"v_fma_f32 v{T+i}, v{b_}, v{r}, v{a}")
        for i in range(0, 8, 2):
            g(f"v_cvt_pk_bf16_f32 v{P+i//2}, v{T+i}, v{T+i+1}")
            g(f"v_lshlrev_b32 v{T+i}, 16, v{P+i//2}")
            g(f"v_and_b32 v{T+i+1}, 0xffff0000, v{P+i//2}")

    def stamp(idx):
        if not stamps:
            return
        lbl = g.label("st")
        g(f"s_cmp_lg_u32 s3, 0")
        g(f"s_cbranch_scc1 {lbl}")
        g("s_memrealtime s[36:37]")
        g("s_waitcnt lgkmcnt(0)")
        g("v_mov_b32 v52, s36")
        g("v_mov_b32 v53, s37")
        g(f"s_lshl_b32 s38, s2, 7")
        g(f"s_add_u32 s38, s38, {0x108000 + idx*8}")
        g("v_mov_b32 v54, s38")
        g("buffer_store_dwordx2 v[52:53], v54, s[80:83], 0 offen")
        g(f"{lbl}:")

    g(f"{NAME}_kernel:")
    g("s_cmp_ge_u32 s2, 256")
    g("s_cbranch_scc1 L_end")
    g("s_load_dwordx16 s[16:31], s[0:1], 0")
    g("s_load_dwordx8 s[32:39], s[0:1], 64")
    g("v_and_b32 v1, 63, v0")
    g("v_lshrrev_b32 v4, 6, v0")
    g("v_lshrrev_b32 v2, 4, v1")
    g("v_and_b32 v3, 15, v1")
    g("v_readfirstlane_b32 s3, v4")
    g("s_and_b32 s4, s2, 7")
    g("s_lshl_b32 s4, s4, 2")
    g("s_lshr_b32 s9, s2, 3")
    g("s_and_b32 s9, s9, 3")
    g("s_add_u32 s4, s4, s9")
    g("s_lshr_b32 s9, s2, 5")
    g("s_lshr_b32 s5, s9, 1")
    g("s_and_b32 s6, s9, 1")
    g("s_xor_b32 s7, s2, 32")
    for i in range(16):
        g(f"s_mov_b32 s{84+i}, {i*4096}")
    g("s_waitcnt lgkmcnt(0)")

    def srd(d, p, size):
        g(f"s_mov_b32 s{d}, s{p}")
        g(f"s_mov_b32 s{d+1}, s{p+1}")
        if size is not None:
            g(f"s_mov_b32 s{d+2}, 0x{size:x}")
        g(f"s_mov_b32 s{d+3}, 0x00020000")
    srd(40, 18, 0x10000000)
    srd(44, 20, 0x10000000)
    srd(48, 22, 0x400000)
    srd(52, 24, 0x400000)
    srd(56, 16, 4096)
    srd(60, 28, None)
    srd(64, 30, None)
    srd(68, 32, None)
    srd(72, 34, 4096)
    srd(76, 36, 256)
    srd(80, 38, WS_SIZE)
    g(f"s_cmp_lt_u32 s2, {NFFN}")
    g("s_cselect_b32 s62, 0x158000, 0")
    g("s_mov_b32 s66, s62")
    g("s_mov_b32 s70, s62")
    stamp(0)

    g("v_lshlrev_b32 v6, 4, v1")
    g("s_cmp_lg_u32 s3, 7")
    g("s_cbranch_scc1 L_pre_done")
    g("s_cmp_lg_u32 s2, 0")
    g("s_cbranch_scc1 L_pre_nz")
    for i in range(4):
        g(f"v_mov_b32 v{8+i}, 0")
    g(f"v_add_u32 v7, 0x{WS_HACC:x}, v6")
    for i in range(9):
        g(f"buffer_store_dwordx4 v[8:11], v7, s[80:83], s{84 + i//4} offen offset:{(i%4)*1024} sc1")
    g("L_pre_nz:")
    g(f"s_cmp_ge_u32 s2, {NFFN}")
    g("s_cbranch_scc1 L_pre_done")
    for i in range(4):
        g(f"v_mov_b32 v{12+i}, -1")
    g("s_lshl_b32 s9, s2, 13")
    g(f"s_add_u32 s9, s9, 0x{WS_FPART:x}")
    g("v_add_u32 v7, s9, v6")
    for i in range(8):
        g(f"buffer_store_dwordx4 v[12:15], v7, s[80:83], s{84 + i//4} offen offset:{(i%4)*1024} sc1")
    g("L_pre_done:")

    g("s_lshl_b32 s9, s5, 10")
    g("v_add_u32 v7, s9, v6")
    g.vmem("buffer_load_dwordx4 v[16:19], v7, s[56:59], 0 offen", "x")
    g("s_lshl_b32 s9, s3, 6")
    g("v_add_u32 v7, s9, v2")
    g("v_lshlrev_b32 v7, 13, v7")
    g("v_lshlrev_b32 v8, 4, v3")
    g("v_add_u32 v7, v7, v8")
    g("s_lshl_b32 s9, s4, 8")
    g("v_add_u32 v7, s9, v7")
    for j in range(16):
        if j:
            g("v_add_u32 v7, 0x8000, v7")
        g.vmem(f"buffer_load_dwordx4 v[{64+4*j}:{67+4*j}], v7, s[48:51], 0 offen" + (" nt" if wq_nt else ""), f"wq{j}")
    g("s_lshl_b32 s9, s5, 5")
    g("s_add_u32 s9, s9, s4")
    g("s_lshl_b32 s9, s9, 21")
    g("s_add_u32 s9, s9, 0x180000")
    g("s_lshl_b32 s10, s6, 18")
    g("s_add_u32 s10, s10, s9")
    g("s_lshl_b32 s11, s3, 15")
    g("s_add_u32 s10, s10, s11")
    g("v_add_u32 v4, s10, v6")
    def kload(j):
        off = j * 1024
        g.vmem(f"buffer_load_dwordx4 v[{128+4*j}:{131+4*j}], v4, s[40:43], s{84+off//4096} offen offset:{off%4096} nt", f"K{j}")
    for j in range(kfirst):
        kload(j)
    g("s_lshl_b32 s10, s6, 7")
    g("s_add_u32 s10, s10, s9")
    g("s_lshl_b32 s11, s3, 16")
    g("s_add_u32 s10, s10, s11")
    g("v_lshrrev_b32 v7, 3, v1")
    g("v_lshlrev_b32 v7, 8, v7")
    g("v_and_b32 v8, 7, v1")
    g("v_lshlrev_b32 v8, 4, v8")
    g("v_add_u32 v5, v7, v8")
    g("v_add_u32 v5, s10, v5")
    g("v_lshrrev_b32 v7, 2, v1")
    g("s_lshl_b32 s10, s3, 6")
    g("v_add_u32 v7, s10, v7")
    g("s_movk_i32 s10, 2752")
    g("v_mul_lo_u32 v7, v7, s10")
    g("v_and_b32 v8, 3, v1")
    g("v_lshlrev_b32 v8, 4, v8")
    g("v_add_u32 v7, v7, v8")
    g("s_lshl_b32 s10, s2, 6")
    g("v_add_u32 v7, s10, v7")
    g("s_lshl_b32 s11, s3, 12")
    for i in range(4):
        if i:
            g(f"v_add_u32 v7, {16*2752}, v7")
        g(f"s_add_u32 m0, s11, {FW_G + i*1024}")
        g.vmem("buffer_load_dwordx4 v7, s[60:63], 0 offen nt lds", "fw")
        g(f"s_add_u32 m0, s11, {FW_U + i*1024}")
        g.vmem("buffer_load_dwordx4 v7, s[64:67], 0 offen nt lds", "fw")
    g("s_lshl_b32 s10, s2, 15")
    g("s_add_u32 s10, s10, s11")
    g("v_add_u32 v7, s10, v6")
    for i in range(4):
        if i:
            g("v_add_u32 v7, 1024, v7")
        g(f"s_add_u32 m0, s11, {FW_D + i*1024}")
        g.vmem("buffer_load_dwordx4 v7, s[68:71], 0 offen nt lds", "fw")

    g.wait("x")
    stamp(8)
    unpack8(16, 20)
    layernorm(20, 28, 44)
    g("v_lshrrev_b32 v7, 3, v1")
    g("v_cmp_eq_u32 vcc, s3, v7")
    g("v_and_b32 v7, 7, v1")
    g("v_lshlrev_b32 v7, 3, v7")
    g("s_lshl_b32 s9, s3, 8")
    g(f"s_add_u32 s9, s9, {XNW}")
    g("v_add_u32 v7, s9, v7")
    g("s_and_saveexec_b64 s[10:11], vcc")
    for r in range(8):
        g(f"ds_write_b32 v7, v{28+r} offset:{(r&3)*64 + (r>>2)*4}")
    g("s_mov_b64 exec, s[10:11]")
    g("v_lshlrev_b32 v7, 6, v2")
    g("v_add_u32 v7, s9, v7")
    g("s_waitcnt lgkmcnt(0)")
    for i in range(4):
        g(f"ds_read_b128 v[{20+4*i}:{23+4*i}], v7 offset:{16*i}")
    for i in range(8):
        g(f"v_mov_b32 v{36+i}, 0")
    g("s_waitcnt lgkmcnt(0)")
    for j in range(16):
        g.wait(f"wq{j}")
        g(f"v_lshrrev_b32 v44, 16, v{20+j}")
        for i in range(4):
            g(f"v_dot2c_f32_bf16 v{36+2*i}, v{64+4*j+i}, v44")
            g(f"v_dot2c_f32_bf16 v{37+2*i}, v{64+4*j+i}, v{20+j}")
    stamp(9)
    for j in range(kfirst, 32):
        kload(j)
    g("v_lshlrev_b32 v7, 5, v0")
    g(f"v_add_u32 v7, {QP}, v7")
    g("ds_write_b128 v7, v[36:39]")
    g("ds_write_b128 v7, v[40:43] offset:16")
    g("s_lshl_b32 s9, s4, 7")
    g("s_lshl_b32 s10, s6, 6")
    g("s_add_u32 s9, s9, s10")
    g("s_lshl_b32 s10, s3, 3")
    g("s_add_u32 s9, s9, s10")
    g("s_lshl_b32 s9, s9, 10")
    g("v_add_u32 v7, s9, v6")
    for k in range(8):
        off = k * 1024
        g.vmem(f"buffer_load_dwordx4 v[{64+4*k}:{67+4*k}], v7, s[52:55], s{84+off//4096} offen offset:{off%4096}", f"wo{k}")
    g("s_and_b32 s9, s3, 3")
    g("s_lshl_b32 s9, s9, 10")
    g("v_add_u32 v7, s9, v6")
    g.vmem("buffer_load_dwordx4 v[60:63], v7, s[56:59], 0 offen", "xall")
    g("s_waitcnt lgkmcnt(0)")
    g("s_barrier")
    g("s_cmp_ge_u32 s3, 2")
    g("s_cbranch_scc1 L_qsum_done")
    g("v_lshlrev_b32 v7, 2, v0")
    g(f"v_add_u32 v7, {QP}, v7")
    for p in range(32):
        g(f"ds_read_b32 v{20+p}, v7 offset:{p*512}")
    g("s_waitcnt lgkmcnt(0)")
    for st in (16, 8, 4, 2, 1):
        for i in range(st):
            g(f"v_add_f32 v{20+i}, v{20+i}, v{20+i+st}")
    g("v_cvt_pk_bf16_f32 v20, v20, v20")
    g("v_lshlrev_b32 v7, 1, v0")
    g(f"v_add_u32 v7, {QB}, v7")
    g("ds_write_b16 v7, v20")
    g("s_waitcnt lgkmcnt(0)")
    g("L_qsum_done:")
    g("s_barrier")
    g("v_lshlrev_b32 v7, 4, v3")
    g(f"v_add_u32 v7, {QB}, v7")
    g("ds_read_b128 v[56:59], v7")
    g("s_lshl_b32 s9, s6, 12")
    g("s_lshl_b32 s10, s3, 9")
    g("s_add_u32 s9, s9, s10")
    g(f"s_add_u32 s9, s9, {S_}")
    g("v_lshlrev_b32 v8, 2, v2")
    g("v_add_u32 v8, s9, v8")
    g("s_waitcnt lgkmcnt(0)")
    stamp(1)

    def kphase(issue_v):
        for j0 in range(0, 32, 4):
            for jj in range(4):
                j = j0 + jj
                g.wait(f"K{j}")
                a = 20 + jj
                kb = 128 + 4 * j
                g(f"v_dot2_f32_bf16 v{a}, v{kb}, v56, 0")
                for i in range(1, 4):
                    g(f"v_dot2_f32_bf16 v{a}, v{kb+i}, v{56+i}, v{a}")
                if issue_v:
                    off = j * 2048
                    g.vmem(f"buffer_load_dwordx4 v[{kb}:{kb+3}], v5, s[44:47], s{84+off//4096} offen offset:{off%4096} nt", f"V{j}")
            for r in (8, 4, 2, 1):
                for jj in range(4):
                    a = 20 + jj
                    g(f"v_add_f32_dpp v{a}, v{a}, v{a} row_ror:{r} row_mask:0xf bank_mask:0xf")
            for jj in (0, 2):
                a = 20 + jj
                g(f"v_cvt_pk_bf16_f32 v24, v{a}, v{a+1}")
                g(f"v_lshlrev_b32 v{a}, 16, v24")
                g(f"v_and_b32 v{a+1}, 0xffff0000, v24")
                g(f"v_mul_f32 v{a}, 0x{SCALE:08x}, v{a}")
                g(f"v_mul_f32 v{a+1}, 0x{SCALE:08x}, v{a+1}")
                g(f"v_cvt_pk_bf16_f32 v24, v{a}, v{a+1}")
                g(f"v_lshlrev_b32 v{a}, 16, v24")
                g(f"v_and_b32 v{a+1}, 0xffff0000, v24")
                g(f"ds_write_b32 v8, v{a} offset:{(j0+jj)*16}")
                g(f"ds_write_b32 v8, v{a+1} offset:{(j0+jj+1)*16}")
        g("s_waitcnt lgkmcnt(0)")
        g("s_barrier")

    saved_vm = list(g.vm)
    g("s_cmp_eq_u32 s3, 7")
    g("s_cbranch_scc1 L_comm")
    kphase(True)
    g("s_barrier")
    g("s_branch L_soft")
    vm_a = list(g.vm)
    g.vm = saved_vm
    g("L_comm:")
    kphase(False)
    g("s_lshl_b32 s9, s6, 12")
    g(f"s_add_u32 s9, s9, {S_}")
    g("v_add_u32 v7, s9, v6")
    for i in range(4):
        g(f"ds_read_b128 v[{20+4*i}:{23+4*i}], v7 offset:{i*1024}")
    g("s_lshl_b32 s9, s2, 12")
    g("v_add_u32 v7, s9, v6")
    g("s_waitcnt lgkmcnt(0)")
    for i in range(4):
        g(f"buffer_store_dwordx4 v[{20+4*i}:{23+4*i}], v7, s[80:83], 0 offen offset:{i*1024} sc1")
    g.wait_all()
    g("s_and_b32 s9, s2, 3")
    g("s_lshl_b32 s9, s9, 3")
    g("s_lshl_b32 s9, 1, s9")
    g("v_mov_b32 v20, s9")
    g("s_and_b32 s9, s2, 0xfc")
    g("v_mov_b32 v21, s9")
    g("s_mov_b64 s[10:11], exec")
    g("s_mov_b64 exec, 1")
    g("buffer_atomic_or v20, v21, s[76:79], 0 offen sc1")
    g("s_mov_b64 exec, s[10:11]")
    g("v_lshlrev_b32 v21, 2, v1")
    g("s_lshr_b32 s12, s7, 2")
    g("s_and_b32 s13, s7, 3")
    g("s_lshl_b32 s13, s13, 3")
    g("s_mov_b32 s14, 0")
    g("L_poll1:")
    g("buffer_load_dword v20, v21, s[76:79], 0 offen sc1")
    g("s_waitcnt vmcnt(0)")
    g("v_readlane_b32 s9, v20, s12")
    g("v_readlane_b32 s10, v20, 0")
    g("s_lshr_b32 s9, s9, s13")
    g("s_and_b32 s9, s9, s10")
    g("s_and_b32 s9, s9, 1")
    g("s_cbranch_scc1 L_poll1_done")
    g("s_sleep 2")
    g("s_add_u32 s14, s14, 1")
    g(f"s_cmp_lt_u32 s14, {SPIN}")
    g("s_cbranch_scc1 L_poll1")
    g("L_poll1_done:")
    g("s_lshl_b32 s9, s7, 12")
    g("v_add_u32 v7, s9, v6")
    for i in range(4):
        g(f"buffer_load_dwordx4 v[{20+4*i}:{23+4*i}], v7, s[80:83], 0 offen offset:{i*1024} sc1")
    g("s_xor_b32 s9, s6, 1")
    g("s_lshl_b32 s9, s9, 12")
    g(f"s_add_u32 s9, s9, {S_}")
    g("v_add_u32 v7, s9, v6")
    g("s_waitcnt vmcnt(0)")
    for i in range(4):
        g(f"ds_write_b128 v7, v[{20+4*i}:{23+4*i}] offset:{i*1024}")
    g("s_waitcnt lgkmcnt(0)")
    g("s_barrier")
    g.vm = []
    for j in range(32):
        off = j * 2048
        kb = 128 + 4 * j
        g.vmem(f"buffer_load_dwordx4 v[{kb}:{kb+3}], v5, s[44:47], s{84+off//4096} offen offset:{off%4096} nt", f"V{j}")
    assert vm_a[-32:] == g.vm
    g("L_soft:")
    stamp(2)
    g(f"v_add_u32 v7, {S_}, v6")
    for i in range(8):
        g(f"ds_read_b128 v[{12+4*i}:{15+4*i}], v7 offset:{i*1024}")
    g("v_lshrrev_b32 v7, 3, v1")
    g("v_lshlrev_b32 v7, 2, v7")
    g("s_lshl_b32 s9, s3, 10")
    g(f"s_add_u32 s9, s9, {S_}")
    g("v_add_u32 v7, s9, v7")
    for j in range(32):
        g(f"ds_read_b32 v{96+j}, v7 offset:{j*32}")
    g("s_waitcnt lgkmcnt(0)")
    g("v_max_f32 v44, v12, v13")
    for i in range(14, 44, 2):
        g(f"v_max3_f32 v44, v44, v{i}, v{i+1}")
    wave_red("v_max_f32", 44, 45)
    for i in range(32):
        g(f"v_sub_f32 v{12+i}, v{12+i}, v45")
        g(f"v_mul_f32 v{12+i}, 0x{LOG2E:08x}, v{12+i}")
        g(f"v_exp_f32 v{12+i}, v{12+i}")
    g("s_nop 0")
    for st in (16, 8, 4, 2, 1):
        for i in range(st):
            g(f"v_add_f32 v{12+i}, v{12+i}, v{12+i+st}")
    wave_red("v_add_f32", 12, 46)
    g("v_rcp_f32 v46, v46")
    for j in range(32):
        g(f"v_sub_f32 v{96+j}, v{96+j}, v45")
        g(f"v_mul_f32 v{96+j}, 0x{LOG2E:08x}, v{96+j}")
        g(f"v_exp_f32 v{96+j}, v{96+j}")
    g("s_nop 0")
    for j in range(0, 32, 2):
        g(f"v_mul_f32 v{96+j}, v{96+j}, v46")
        g(f"v_mul_f32 v{97+j}, v{97+j}, v46")
        g(f"v_cvt_pk_bf16_f32 v47, v{96+j}, v{97+j}")
        g(f"v_lshlrev_b32 v{96+j}, 16, v47")
        g(f"v_and_b32 v{97+j}, 0xffff0000, v47")
    for i in range(8):
        g(f"v_mov_b32 v{12+i}, 0")
    stamp(3)
    for j in range(32):
        kb = 128 + 4 * j
        g(f"v_lshrrev_b32 v{20+(j&1)}, 16, v{96+j}")
        g.wait(f"V{j}")
        for i in range(4):
            g(f"v_dot2c_f32_bf16 v{12+2*i}, v{kb+i}, v{20+(j&1)}")
            g(f"v_dot2c_f32_bf16 v{13+2*i}, v{kb+i}, v{96+j}")
    stamp(4)
    g("v_lshrrev_b32 v7, 3, v0")
    g("s_movk_i32 s9, 272")
    g("v_mul_lo_u32 v7, v7, s9")
    g("v_and_b32 v8, 7, v1")
    g("v_lshlrev_b32 v8, 5, v8")
    g("v_add_u32 v7, v7, v8")
    g(f"v_add_u32 v7, {QP}, v7")
    g("ds_write_b128 v7, v[12:15]")
    g("ds_write_b128 v7, v[16:19] offset:16")
    g("v_mul_lo_u32 v7, v1, s9")
    g("s_lshl_b32 s10, s3, 5")
    g(f"s_add_u32 s10, s10, {QP}")
    g("v_add_u32 v7, s10, v7")
    g("s_waitcnt lgkmcnt(0)")
    g("s_barrier")
    g("ds_read_b128 v[12:15], v7")
    g("ds_read_b128 v[16:19], v7 offset:16")
    g("s_waitcnt lgkmcnt(0)")
    for a in (12, 14, 16, 18):
        g(f"v_permlane32_swap_b32 v{a}, v{a+1}")
    for a in (12, 14, 16, 18):
        g(f"v_add_f32 v{a}, v{a}, v{a+1}")
    for a in (12, 16):
        g(f"v_permlane16_swap_b32 v{a}, v{a+2}")
    for a in (12, 16):
        g(f"v_add_f32 v{a}, v{a}, v{a+2}")
    for r in (8, 4, 2, 1):
        for a in (12, 16):
            g(f"v_add_f32_dpp v{a}, v{a}, v{a} row_ror:{r} row_mask:0xf bank_mask:0xf")
    g("v_cvt_pk_bf16_f32 v12, v12, 0")
    g("v_cvt_pk_bf16_f32 v16, v16, 0")
    for base, a in ((0, 12), (4, 16)):
        for row, val in ((0, 0), (1, 2), (2, 1), (3, 3)):
            g(f"v_readlane_b32 s{16+base+val}, v{a}, {16*row}")
    for k in range(8):
        g(f"s_lshl_b32 s{24+k}, s{16+k}, 16")
    for i in range(8):
        g(f"v_mov_b32 v{12+i}, 0")
    for k in range(8):
        for i in range(4):
            g(f"v_dot2c_f32_bf16 v{12+2*i}, s{16+k}, v{64+4*k+i}")
            g(f"v_dot2c_f32_bf16 v{13+2*i}, s{24+k}, v{64+4*k+i}")
    g("v_lshlrev_b32 v7, 5, v0")
    g(f"v_add_u32 v7, {W1}, v7")
    g("ds_write_b128 v7, v[12:15]")
    g("ds_write_b128 v7, v[16:19] offset:16")
    g("v_lshlrev_b32 v7, 2, v0")
    g(f"v_add_u32 v8, {W1}, v7")
    g("s_waitcnt lgkmcnt(0)")
    g("s_barrier")
    for w in range(8):
        g(f"ds_read_b32 v{12+w}, v8 offset:{w*2048}")
    g("s_lshl_b32 s9, s5, 11")
    g(f"s_add_u32 s9, s9, 0x{WS_HACC:x}")
    g("v_add_u32 v7, s9, v7")
    g("s_waitcnt lgkmcnt(0)")
    for st in (4, 2, 1):
        for i in range(st):
            g(f"v_add_f32 v{12+i}, v{12+i}, v{12+i+st}")
    g("buffer_atomic_add_f32 v12, v7, s[80:83], 0 offen")
    g.wait_all()
    g("s_barrier")
    g("s_cmp_lg_u32 s3, 0")
    g("s_cbranch_scc1 L_flag2_done")
    g("s_lshl_b32 s9, s2, 2")
    g(f"s_add_u32 s9, s9, 0x{WS_FLAG2:x}")
    g("v_mov_b32 v7, s9")
    g("v_mov_b32 v8, 1")
    g("s_mov_b64 s[10:11], exec")
    g("s_mov_b64 exec, 1")
    g("buffer_store_dword v8, v7, s[80:83], 0 offen sc1")
    g("s_mov_b64 exec, s[10:11]")
    g("L_flag2_done:")
    stamp(5)
    g(f"s_cmp_ge_u32 s2, {NFFN}")
    g("s_cbranch_scc1 L_end")
    g("v_lshlrev_b32 v7, 3, v2")
    g("v_lshrrev_b32 v8, 2, v3")
    g("v_add_u32 v7, v7, v8")
    g("v_and_b32 v8, 3, v1")
    g("v_lshlrev_b32 v8, 3, v8")
    g("v_lshlrev_b32 v9, 10, v7")
    g("v_add_u32 v9, v9, v8")
    g("s_lshl_b32 s9, s3, 7")
    g(f"s_add_u32 s9, s9, {FW_D}")
    g("v_add_u32 v9, s9, v9")
    for i in range(4):
        g(f"ds_read_b64_tr_b16 v[{32+4*i}:{33+4*i}], v9 offset:{i*32}")
        g(f"ds_read_b64_tr_b16 v[{34+4*i}:{35+4*i}], v9 offset:{i*32+4096}")
    g("s_cmp_ge_u32 s3, 4")
    g("s_cbranch_scc1 L_ffn_hi")
    g(f"v_add_u32 v9, 0x{WS_FLAG2:x}, v6")
    g("s_mov_b32 s14, 0")
    g("L_poll2:")
    g("buffer_load_dwordx4 v[12:15], v9, s[80:83], 0 offen sc1")
    g("s_waitcnt vmcnt(0)")
    g("v_and_b32 v12, v12, v13")
    g("v_and_b32 v14, v14, v15")
    g("v_and_b32 v12, v12, v14")
    g("v_cmp_eq_u32 vcc, 1, v12")
    g("s_cmp_eq_u64 vcc, exec")
    g("s_cbranch_scc1 L_poll2_done")
    g("s_sleep 1")
    g("s_add_u32 s14, s14, 1")
    g(f"s_cmp_lt_u32 s14, {SPIN}")
    g("s_cbranch_scc1 L_poll2")
    g("L_poll2_done:")
    g("s_lshl_b32 s9, s3, 11")
    g(f"s_add_u32 s9, s9, 0x{WS_HACC:x}")
    g("v_lshlrev_b32 v9, 5, v1")
    g("v_add_u32 v10, s9, v9")
    g("buffer_load_dwordx4 v[12:15], v10, s[80:83], 0 offen sc1")
    g("buffer_load_dwordx4 v[16:19], v10, s[80:83], 0 offen offset:16 sc1")
    unpack8(60, 128)
    g("s_waitcnt vmcnt(0)")
    for i in range(0, 8, 2):
        g(f"v_cvt_pk_bf16_f32 v20, v{12+i}, v{13+i}")
        g(f"v_lshlrev_b32 v{12+i}, 16, v20")
        g(f"v_and_b32 v{13+i}, 0xffff0000, v20")
    for i in range(8):
        g(f"v_add_f32 v{12+i}, v{12+i}, v{128+i}")
    for i in range(0, 8, 2):
        g(f"v_cvt_pk_bf16_f32 v20, v{12+i}, v{13+i}")
        g(f"v_lshlrev_b32 v{12+i}, 16, v20")
        g(f"v_and_b32 v{13+i}, 0xffff0000, v20")
    g("s_lshl_b32 s9, s3, 11")
    g(f"s_add_u32 s9, s9, {HB}")
    g("v_add_u32 v10, s9, v9")
    g("ds_write_b128 v10, v[12:15]")
    g("ds_write_b128 v10, v[16:19] offset:16")
    layernorm(12, 136, 152)
    g("s_lshl_b32 s9, s3, 10")
    g(f"s_add_u32 s9, s9, {HN}")
    g("v_add_u32 v10, s9, v6")
    g("ds_write_b128 v10, v[152:155]")
    g("s_waitcnt lgkmcnt(0)")
    g("s_barrier")
    g("s_barrier")
    g("s_branch L_ffn_down")
    g("L_ffn_hi:")
    g("s_cmp_ge_u32 s3, 6")
    g("s_cbranch_scc1 L_ffn_idle")
    g("v_lshlrev_b32 v9, 6, v7")
    g("v_add_u32 v9, v9, v8")
    g("s_sub_u32 s9, s3, 4")
    g("s_lshl_b32 s9, s9, 5")
    g("v_add_u32 v9, s9, v9")
    g(f"v_add_u32 v10, {FW_U}, v9")
    for ks in range(16):
        g(f"ds_read_b64_tr_b16 v[{128+4*ks}:{129+4*ks}], v9 offset:{ks*2048}")
        g(f"ds_read_b64_tr_b16 v[{130+4*ks}:{131+4*ks}], v9 offset:{ks*2048+256}")
    for ks in range(16):
        g(f"ds_read_b64_tr_b16 v[{192+4*ks}:{193+4*ks}], v10 offset:{ks*2048}")
        g(f"ds_read_b64_tr_b16 v[{194+4*ks}:{195+4*ks}], v10 offset:{ks*2048+256}")
    g("v_and_b32 v9, 3, v1")
    g("v_lshlrev_b32 v9, 10, v9")
    g("v_lshlrev_b32 v10, 4, v2")
    g("v_add_u32 v9, v9, v10")
    g(f"v_add_u32 v9, {HN}, v9")
    for i in range(8):
        g(f"v_mov_b32 v{12+i}, 0")
    g("s_waitcnt lgkmcnt(0)")
    g("s_barrier")
    for ks in range(16):
        g(f"ds_read_b128 v[{64+4*ks}:{67+4*ks}], v9 offset:{ks*64}")
    for ks in range(16):
        g(f"s_waitcnt lgkmcnt({15-ks})")
        g(f"v_mfma_f32_16x16x32_bf16 v[12:15], v[{128+4*ks}:{131+4*ks}], v[{64+4*ks}:{67+4*ks}], v[12:15]")
        g(f"v_mfma_f32_16x16x32_bf16 v[16:19], v[{192+4*ks}:{195+4*ks}], v[{64+4*ks}:{67+4*ks}], v[16:19]")
    for i in range(0, 8, 2):
        g(f"v_cvt_pk_bf16_f32 v20, v{12+i}, v{13+i}")
        g(f"v_lshlrev_b32 v{12+i}, 16, v20")
        g(f"v_and_b32 v{13+i}, 0xffff0000, v20")
    for i in range(4):
        g(f"v_mul_f32 v{20+i}, 0x{LOG2E ^ 0x80000000:08x}, v{12+i}")
        g(f"v_exp_f32 v{20+i}, v{20+i}")
    g("s_nop 0")
    for i in range(4):
        g(f"v_add_f32 v{20+i}, 1.0, v{20+i}")
        g(f"v_rcp_f32 v{24+i}, v{20+i}")
    g("s_nop 0")
    for i in range(4):
        g(f"v_mul_f32 v{28+i}, v{12+i}, v{24+i}")
        g(f"v_fma_f32 v30, -v{28+i}, v{20+i}, v{12+i}" if False else f"v_fma_f32 v{48+i}, -v{28+i}, v{20+i}, v{12+i}")
        g(f"v_fma_f32 v{12+i}, v{48+i}, v{24+i}, v{28+i}")
    for i in range(0, 4, 2):
        g(f"v_cvt_pk_bf16_f32 v20, v{12+i}, v{13+i}")
        g(f"v_lshlrev_b32 v{12+i}, 16, v20")
        g(f"v_and_b32 v{13+i}, 0xffff0000, v20")
    for i in range(4):
        g(f"v_mul_f32 v{12+i}, v{12+i}, v{16+i}")
    g("v_cvt_pk_bf16_f32 v20, v12, v13")
    g("v_cvt_pk_bf16_f32 v21, v14, v15")
    g("v_lshlrev_b32 v9, 6, v3")
    g("v_lshlrev_b32 v10, 3, v2")
    g("v_add_u32 v9, v9, v10")
    g(f"s_add_u32 s9, s9, {ACT}")
    g("v_add_u32 v9, s9, v9")
    g("v_cmp_gt_u32 vcc, 4, v3")
    g("s_and_saveexec_b64 s[10:11], vcc")
    g("ds_write_b64 v9, v[20:21]")
    g("s_mov_b64 exec, s[10:11]")
    g("s_waitcnt lgkmcnt(0)")
    g("s_barrier")
    g("s_branch L_ffn_down")
    g("L_ffn_idle:")
    g("s_barrier")
    g("s_barrier")
    g("L_ffn_down:")
    g("v_and_b32 v9, 3, v1")
    g("v_lshlrev_b32 v9, 6, v9")
    g("v_lshlrev_b32 v10, 4, v2")
    g("v_add_u32 v9, v9, v10")
    g(f"v_add_u32 v9, {ACT}, v9")
    g("ds_read_b128 v[28:31], v9")
    g("v_lshlrev_b32 v9, 11, v3")
    g("v_add_u32 v9, v9, v10")
    g("s_lshl_b32 s9, s2, 13")
    g("s_lshl_b32 s10, s3, 8")
    g("s_add_u32 s9, s9, s10")
    g(f"s_add_u32 s9, s9, 0x{WS_FPART:x}")
    g("v_add_u32 v9, s9, v9")
    g("v_cmp_gt_u32 vcc, 4, v3")
    g("s_waitcnt lgkmcnt(0)")
    for i in range(4):
        g(f"v_mfma_f32_16x16x32_bf16 v[{12+4*i}:{15+4*i}], v[{32+4*i}:{35+4*i}], v[28:31], 0")
    g("s_and_saveexec_b64 s[10:11], vcc")
    for i in range(4):
        g(f"buffer_store_dwordx4 v[{12+4*i}:{15+4*i}], v9, s[80:83], 0 offen offset:{i*64} sc1")
    g("s_mov_b64 exec, s[10:11]")
    stamp(6)
    g("s_cmp_ge_u32 s2, 32")
    g("s_cbranch_scc1 L_end")
    g("s_lshl_b32 s9, s2, 8")
    g("s_lshl_b32 s10, s3, 13")
    g("s_add_u32 s9, s9, s10")
    g(f"s_add_u32 s9, s9, 0x{WS_FPART:x}")
    g("v_lshlrev_b32 v10, 2, v1")
    g("v_add_u32 v9, s9, v10")
    for i in range(6):
        g(f"s_mov_b32 s{16+i}, {i*65536}")
    g("s_mov_b32 s14, 0")
    g("L_poll3:")
    for i in range(6):
        g(f"buffer_load_dword v{12+i}, v9, s[80:83], s{16+i} offen sc1")
    g("s_waitcnt vmcnt(0)")
    g("v_and_b32 v20, v12, v13")
    g("v_cmp_eq_u32 vcc, -1, v12")
    for i in range(1, 6):
        g(f"v_cmp_eq_u32 s[10:11], -1, v{12+i}")
        g("s_or_b64 vcc, vcc, s[10:11]")
    g("s_cmp_eq_u64 vcc, 0")
    g("s_cbranch_scc1 L_poll3_done")
    g("s_sleep 1")
    g("s_add_u32 s14, s14, 1")
    g(f"s_cmp_lt_u32 s14, {SPIN}")
    g("s_cbranch_scc1 L_poll3")
    g("L_poll3_done:")
    g("v_add_f32 v12, v12, v13")
    g("v_add_f32 v14, v14, v15")
    g("v_add_f32 v16, v16, v17")
    g("v_add_f32 v12, v12, v14")
    g("v_add_f32 v12, v12, v16")
    g("v_lshlrev_b32 v9, 2, v0")
    g(f"v_add_u32 v9, {FIN}, v9")
    g("ds_write_b32 v9, v12")
    g("s_waitcnt lgkmcnt(0)")
    g("s_barrier")
    g("s_cmp_lg_u32 s3, 0")
    g("s_cbranch_scc1 L_end")
    for w in range(8):
        g(f"ds_read_b32 v{12+w}, v9 offset:{w*256}")
    g("s_lshl_b32 s9, s2, 8")
    g(f"s_add_u32 s9, s9, {HB}")
    g("v_add_u32 v10, s9, v10")
    g("ds_read_b32 v20, v10")
    g("s_waitcnt lgkmcnt(0)")
    for st in (4, 2, 1):
        for i in range(st):
            g(f"v_add_f32 v{12+i}, v{12+i}, v{12+i+st}")
    bf16r(12, 21)
    g("v_add_f32 v12, v12, v20")
    g("v_cvt_pk_bf16_f32 v12, v12, v12")
    g("s_lshl_b32 s9, s2, 7")
    g("v_lshlrev_b32 v10, 1, v1")
    g("v_add_u32 v10, s9, v10")
    g("buffer_store_short v12, v10, s[72:75], 0 offen")
    stamp(7)
    g("L_end:")
    g("s_endpgm")
    lines, n = hazard_pass(g.lines)
    body = "\n".join(lines)
    out = HEADER
    out += "; Override launch geometry by editing the next line (default: block=256,\n"
    out += f"; @launch grid=(256,1,1) block=(512,1,1) lds={LDS_BYTES}\n"
    out += '.amdgcn_target "amdgcn-amd-amdhsa--gfx950"\n.text\n'
    out += f".globl {NAME}_kernel\n.p2align 8\n.type {NAME}_kernel,@function\n"
    out += body + "\n"
    out += f""".section .rodata,"a"
.p2align 6
.amdhsa_kernel {NAME}_kernel
  .amdhsa_next_free_vgpr 256
  .amdhsa_next_free_sgpr 102
  .amdhsa_accum_offset 256
  .amdhsa_group_segment_fixed_size 0
  .amdhsa_kernarg_size 96
  .amdhsa_user_sgpr_count 2
  .amdhsa_user_sgpr_kernarg_segment_ptr 1
  .amdhsa_system_sgpr_workgroup_id_x 1
.end_amdhsa_kernel
"""
    return out, n


if __name__ == "__main__":
    out, n = build(False)
    open("k1.s", "w").write(out)
    out2, _ = build(True)
    open("k1_st.s", "w").write(out2)
    for kf in (0, 8, 16):
        open(f"k1_st_kf{kf}.s", "w").write(build(True, kfirst=kf)[0])
    open("k1_st_wqnt.s", "w").write(build(True, wq_nt=True)[0])
    print("nops inserted", n, "lines", out.count("\n"))
```
